```python
import torch

def _softmax(x, axis=-1):
    return torch.softmax(x, dim=axis)
def _gelu(x):
    return torch.nn.functional.gelu(x, approximate="tanh")
def _silu(x):
    return torch.nn.functional.silu(x)
def _sigmoid(x):
    return torch.sigmoid(x)
def _layernorm(x, axis=-1, eps=1e-5):
    m = x.mean(dim=axis, keepdim=True)
    v = x.var(dim=axis, keepdim=True, unbiased=False)
    return (x - m) / torch.sqrt(v + eps)
def _scatter_add(tgt, idx, src, axis=0):
    return tgt.clone().index_add_(axis, idx, src)
def _segment_sum(src, seg, n):
    out = torch.zeros((n,) + src.shape[1:], dtype=src.dtype)
    return out.index_add_(0, seg, src)
def _pad(x, pw):
    flat = tuple(v for pair in reversed(pw) for v in pair)
    return torch.nn.functional.pad(x, flat)

kernel_name = 'recurrent_scan__ssm_conv_s5__dense_activation_silu__prompt'

def setup_inputs():

    _w = (lambda a: (lambda t: t.to(torch.bfloat16) if t.is_floating_point() else t)(torch.as_tensor(a)))
    def _A_setup():
        B, S, D = 1, 2048, 576
        P = D
        Lambda_re = -0.5 * (lambda _x: torch.exp(torch.as_tensor(_x)))((lambda *s: torch.randn(*s, dtype=torch.bfloat16) * 0.8)(P))
        Lambda_im = (lambda *s: torch.randn(*s, dtype=torch.bfloat16) * 0.8)(P) * 1.0
        B_re = (lambda *s: torch.randn(*s, dtype=torch.bfloat16) * 0.8)(P, D) * (D ** -0.5)
        B_im = (lambda *s: torch.randn(*s, dtype=torch.bfloat16) * 0.8)(P, D) * (D ** -0.5)
        C_re = (lambda *s: torch.randn(*s, dtype=torch.bfloat16) * 0.8)(D, P) * (P ** -0.5)
        C_im = (lambda *s: torch.randn(*s, dtype=torch.bfloat16) * 0.8)(D, P) * (P ** -0.5)
        log_dt = (lambda *s: torch.randn(*s, dtype=torch.bfloat16) * 0.8)(P) * 0.3 - 2.0
        Dskip = (lambda *s: torch.randn(*s, dtype=torch.bfloat16) * 0.4)(D)
        return {
            "x": _w((lambda *s: torch.randn(*s, dtype=torch.bfloat16) * 0.05)(B, S, D)),
            "Lambda_re": _w(Lambda_re),
            "Lambda_im": _w(Lambda_im),
            "B_re": _w(B_re),
            "B_im": _w(B_im),
            "C_re": _w(C_re),
            "C_im": _w(C_im),
            "log_dt": _w(log_dt),
            "Dskip": _w(Dskip),
        }
    _A_in = _A_setup()

    def _B_setup():
        B, S, D, F = 1, 2048, 576, 4608
        return {
            "x": _w((lambda *s: torch.randn(*s, dtype=torch.bfloat16) * 0.05)(B, S, D)),
            "w1": _w((lambda *s: torch.randn(*s, dtype=torch.bfloat16) * 0.8)(D, F) * (D ** -0.5)),
            "w2": _w((lambda *s: torch.randn(*s, dtype=torch.bfloat16) * 0.1)(F, D) * (F ** -0.5)),
        }
    _B_in = _B_setup()

    return {
        "A_x": _A_in["x"],
        "A_Lambda_re": _A_in["Lambda_re"],
        "A_Lambda_im": _A_in["Lambda_im"],
        "A_B_re": _A_in["B_re"],
        "A_B_im": _A_in["B_im"],
        "A_C_re": _A_in["C_re"],
        "A_C_im": _A_in["C_im"],
        "A_log_dt": _A_in["log_dt"],
        "A_Dskip": _A_in["Dskip"],
        "B_x": _B_in["x"],
        "B_w1": _B_in["w1"],
        "B_w2": _B_in["w2"],
    }

def reference(A_x, A_Lambda_re, A_Lambda_im, A_B_re, A_B_im, A_C_re, A_C_im, A_log_dt, A_Dskip, B_x, B_w1, B_w2):
    def _A_ref(x, Lambda_re, Lambda_im, B_re, B_im, C_re, C_im, log_dt, Dskip):
        Bsz, L, H = x.shape
        Lam = Lambda_re + 1j * Lambda_im
        Bmat = B_re + 1j * B_im
        Cmat = C_re + 1j * C_im
        dt = torch.exp(log_dt)
        Lam_bar = torch.exp(dt * Lam)
        B_bar = ((Lam_bar - 1.0) / Lam)[:, None] * Bmat
        Bu = torch.einsum("bld,pd->blp", x + 0j, B_bar)
        h = torch.zeros_like(Bu[:, 0, :])
        hs = []
        for t in range(L):
            h = Lam_bar[None, :] * h + Bu[:, t, :]
            hs.append(h)
        hseq = torch.stack(hs, 1)
        y = 2.0 * torch.einsum("blp,dp->bld", hseq, Cmat).real + x * Dskip[None, None, :]
        return y

    def _B_ref(x, w1, w2):
        h = torch.einsum("bsd,df->bsf", x, w1)
        h = _silu(h)
        out = torch.einsum("bsf,fd->bsd", h, w2)
        return out

    x = A_x
    xn = _layernorm(x, axis=-1)
    s = _A_ref(xn, A_Lambda_re, A_Lambda_im, A_B_re, A_B_im, A_C_re, A_C_im, A_log_dt, A_Dskip)
    g = _silu(_B_ref(xn, B_w1, B_w2))
    return x + s * g
```

```python
import re

_REG = re.compile(r'^(-|\|)?(?:abs\()?([vsa])(?:(\d+)|\[(\d+):(\d+)\])\)?\|?$')
TRANS = ("v_exp_f32", "v_log_f32", "v_rcp_f32", "v_rsq_f32", "v_sqrt_f32", "v_sin_f32", "v_cos_f32")

def regs_of(tok):
    tok = tok.strip()
    if tok in ("vcc",): return {("s", 106), ("s", 107)}
    if tok == "vcc_lo": return {("s", 106)}
    if tok == "vcc_hi": return {("s", 107)}
    if tok == "m0": return {("s", 124)}
    if tok == "exec": return {("s", 126), ("s", 127)}
    m = _REG.match(tok)
    if not m: return set()
    k = m.group(2)
    if m.group(3) is not None: return {(k, int(m.group(3)))}
    return {(k, i) for i in range(int(m.group(4)), int(m.group(5)) + 1)}

class Ins:
    __slots__ = ("text", "op", "cls", "dst", "src", "srcA", "srcC", "passes", "states", "dpp", "lds_dma", "wide_store", "data")

def parse(text):
    t = text.split(";")[0].strip()
    I = Ins(); I.text = text
    parts = t.split(None, 1)
    op = parts[0]; I.op = op
    rest = parts[1] if len(parts) > 1 else ""
    ops = []; depth = 0; cur = ""
    for ch in rest:
        if ch in "[(": depth += 1
        if ch in "])": depth -= 1
        if ch == "," and depth == 0: ops.append(cur.strip()); cur = ""
        else: cur += ch
    if cur.strip(): ops.append(cur.strip())
    mods = ""
    if ops:
        last = ops[-1].split(None, 1)
        ops[-1] = last[0]
        mods = last[1] if len(last) > 1 else ""
    I.dst = set(); I.src = set(); I.srcA = set(); I.srcC = set(); I.passes = 0; I.states = 1
    I.dpp = ("row_" in mods or "quad_perm" in mods or op.endswith("_dpp")); I.lds_dma = False; I.wide_store = False; I.data = set()
    R = [regs_of(o) for o in ops]
    if op.startswith("v_mfma"):
        I.cls = "mfma"; I.dst = R[0]; I.srcA = R[1] | R[2]; I.srcC = R[3]; I.src = I.srcA | I.srcC
        I.passes = 8 if "32x32" in op else 4
    elif op.startswith("v_"):
        I.cls = "valu"
        base = op.replace("_e32", "").replace("_e64", "").replace("_dpp", "")
        if base in TRANS: I.cls = "trans"
        if base.startswith("v_dot"): I.cls = "dot"
        if "permlane" in op and "swap" in op:
            I.dst = R[0] | R[1]; I.src = R[0] | R[1]
        elif base == "v_nop":
            pass
        else:
            I.dst = set(R[0])
            for r in R[1:]: I.src |= r
            if base.startswith(("v_fmac", "v_dot2c", "v_pk_fmac")) or I.dpp: I.src |= R[0]
            if base.startswith("v_dot"): I.srcC = R[3] if len(R) > 3 else set(R[0])
            if base.startswith("v_cmpx"): raise ValueError("avoid v_cmpx")
            if base.startswith(("v_add_co", "v_sub_co", "v_addc_co")): I.dst |= R[1];
    elif op.startswith("ds_"):
        I.cls = "ds"
        if "read" in op or "bpermute" in op or "swizzle" in op:
            I.dst = R[0]
            for r in R[1:]: I.src |= r
        else:
            for r in R: I.src |= r
    elif op.startswith(("buffer_", "global_")):
        I.cls = "vmem"
        if re.search(r'\blds\b', mods) or "load_lds" in op:
            I.lds_dma = True
            for r in R: I.src |= r
            I.src |= regs_of("m0")
        elif "load" in op:
            I.dst = R[0]
            for r in R[1:]: I.src |= r
        elif op in ("buffer_inv", "buffer_wbl2"):
            pass
        else:
            for r in R: I.src |= r
            if op.startswith("buffer_"): I.data = R[0]
            else: I.data = R[1]
            if "x4" in op or "x3" in op: I.wide_store = True
            if "atomic" in op and "sc0" in mods: I.dst = R[0]
    elif op.startswith("s_"):
        I.cls = "salu"
        if op == "s_nop": I.states = int(ops[0], 0) + 1
        elif op.startswith(("s_cmp", "s_cbranch", "s_branch", "s_waitcnt", "s_barrier", "s_endpgm", "s_sleep", "s_setprio", "s_bitcmp")):
            for r in R: I.src |= r
        else:
            I.dst = set(R[0]) if R else set()
            for r in R[1:]: I.src |= r
            if "saveexec" in op: I.dst |= regs_of("exec")
    else:
        raise ValueError("unknown op " + text)
    return I

VALU_LIKE = ("valu", "trans", "dot")

def need(P, C):
    n = 0
    pv = {r for r in P.dst if r[0] in "va"}
    ps = {r for r in P.dst if r[0] == "s"}
    if P.cls in VALU_LIKE:
        if C.cls == "mfma" and pv & C.src: n = max(n, 2)
        if P.cls == "trans" and C.cls in ("valu", "dot") and pv & C.src: n = max(n, 1)
        if C.cls in VALU_LIKE and pv & C.src:
            if "permlane" in C.op or C.dpp: n = max(n, 2)
            if C.op.startswith(("v_readfirstlane", "v_readlane")): n = max(n, 1)
        if ps:
            if C.cls in VALU_LIKE and ps & C.src: n = max(n, 4 if C.op.startswith(("v_readlane", "v_writelane")) else 2)
            if C.cls == "vmem" and ps & C.src: n = max(n, 5)
            if C.cls == "salu" and ps & C.src: n = max(n, 1)
        if P.cls == "dot" and pv & (C.src | C.dst) and C.cls != "salu":
            same = C.cls == "dot" and C.op == P.op and (pv & C.src) <= C.srcC and not (pv & (C.src - C.srcC))
            if not same: n = max(n, 3)
    if P.cls == "mfma":
        big = P.passes == 8
        if C.cls == "mfma":
            if pv & C.srcA: n = max(n, 12 if big else 8)
            if pv & C.srcC and not (C.srcC == pv and C.passes == P.passes): n = max(n, 10 if big else 6)
            if pv & C.dst and not (pv & C.srcC): n = max(n, 12 if big else 8)
        elif C.cls in VALU_LIKE or C.cls in ("ds", "vmem"):
            if pv & (C.src | C.dst): n = max(n, 12 if big else 8)
        if C.cls in VALU_LIKE and P.srcC & C.dst: n = max(n, 7 if big else 3)
    if P.cls == "salu" and ("s", 124) in P.dst and C.lds_dma: n = max(n, 1)
    if P.cls == "vmem" and P.wide_store and P.data & C.dst: n = max(n, 2 if C.cls in VALU_LIKE or C.cls == "mfma" else 1)
    return n

_uid = [0]
def uid(p="L"):
    _uid[0] += 1
    return f"{p}_{_uid[0]}"

class Em:
    def __init__(self):
        self.alts = []
        self.saved = {}
        self.lines = []
        self.hist = []
        self.vm = []
        self.vm_done = 0
        self.lg = 0; self.lg_done = 0
        self.nops = 0
        self.opt = False
    def raw(self, s): self.lines.append(s)
    def label(self, name):
        self.lines.append(name + ":")
        for h in self.saved.pop(name, []): self.alts.append(h)
    def skip(self, br, name):
        self.i(f"{br} {name}")
        self.saved.setdefault(name, []).append(list(self.hist))
        for a in self.alts: self.saved[name].append(list(a))
    def comment(self, s): self.lines.append("; " + s)
    def i(self, text):
        I = parse(text)
        pad = 0
        for H in [self.hist] + self.alts:
            dist = 0
            for P in reversed(H):
                n = need(P, I)
                if n > dist: pad = max(pad, n - dist)
                dist += P.states
                if dist >= 13: break
        while pad > 0:
            k = min(pad, 16)
            self._emit(parse(f"s_nop {k-1}")); self.nops += k; pad -= k
        self._emit(I)
        if I.cls == "vmem" and I.op not in ("buffer_inv", "buffer_wbl2"):
            self.vm.append(self.opt); return len(self.vm) - 1
        if I.cls == "ds":
            self.lg += 1; return self.lg - 1
        return None
    def _emit(self, I):
        self.lines.append("  " + I.text)
        self.hist.append(I)
        if len(self.hist) > 20: self.hist.pop(0)
        keep = []
        for a in self.alts:
            a.append(I)
            if a[-14:] != self.hist[-14:]: keep.append(a[-20:])
        self.alts = keep
    def drain(self, n=12):
        self.i(f"s_nop {n-1}")
    def wait(self, vm=None, lg=None):
        parts = []
        if vm is not None and vm >= self.vm_done:
            n = sum(1 for o in self.vm[vm + 1:] if not o)
            assert n <= 63, n
            parts.append(f"vmcnt({n})"); self.vm_done = vm + 1
        if lg is not None and lg >= self.lg_done:
            n = self.lg - 1 - lg
            if n > 15: n = 15;
            parts.append(f"lgkmcnt({n})"); self.lg_done = self.lg - n
        if parts: self.i("s_waitcnt " + " ".join(parts))
    def wait_all(self, vm=True, lg=True):
        parts = []
        if vm: parts.append("vmcnt(0)"); self.vm_done = len(self.vm)
        if lg: parts.append("lgkmcnt(0)"); self.lg_done = self.lg
        self.i("s_waitcnt " + " ".join(parts))
    def text(self): return "\n".join(self.lines) + "\n"
```

```python
def fin(e, opt, G):
    vr, f32, srd = G.vr, G.f32, G.srd
    e.i("s_cmp_ge_u32 s2, 576")
    e.i("s_cbranch_scc1 L_k2_end")
    e.i("s_load_dwordx2 s[24:25], s[0:1], 0")
    e.i("s_load_dwordx2 s[26:27], s[0:1], 64")
    e.i("s_load_dwordx2 s[28:29], s[0:1], 96")
    e.i("s_load_dwordx2 s[30:31], s[0:1], 112")
    e.i("v_lshrrev_b32 v1, 6, v0")
    e.i("v_and_b32 v2, 63, v0")
    e.i("v_readfirstlane_b32 s20, v1")
    e.i("s_mul_hi_u32 s21, s2, 0x1C71C71D")
    e.i("s_mul_i32 s22, s21, 9")
    e.i("s_sub_u32 s22, s2, s22")
    e.i("s_lshl_b32 s22, s22, 2")
    e.i("s_add_u32 s22, s22, s20")
    e.i("s_lshl_b32 s23, s2, 2")
    e.i("s_add_u32 s23, s23, s20")
    e.i("s_lshl_b32 s23, s23, 10")
    e.i(f"s_add_u32 s23, s23, {G.WS_PART}")
    e.i("v_lshlrev_b32 v3, 4, v2")
    e.i("v_and_b32 v4, 15, v2")
    e.i("v_lshrrev_b32 v5, 4, v2")
    e.i("v_lshrrev_b32 v6, 2, v4")
    e.i("v_and_b32 v7, 3, v4")
    e.i("v_lshl_add_u32 v6, v6, 3, v7")
    e.i("s_lshl_b32 s32, s21, 5")
    e.i("v_add_u32 v6, s32, v6")
    e.i("s_lshl_b32 s33, s22, 4")
    e.i("v_lshl_add_u32 v7, v5, 2, s33")
    e.i("v_mul_u32_u24 v8, 576, v6")
    e.i("v_add_u32 v8, v8, v7")
    e.i("v_lshlrev_b32 v9, 1, v8")
    e.i("v_lshlrev_b32 v10, 2, v8")
    e.i("v_lshlrev_b32 v11, 3, v6")
    e.i("v_lshlrev_b32 v12, 1, v7")
    e.i("s_waitcnt lgkmcnt(0)")
    srd(e, 4, 24, 2048 * 1152)
    srd(e, 8, 26, 1152)
    srd(e, 12, 28, 2048 * 576 * 4)
    srd(e, 16, 30, G.WS_USED)
    pt = []
    for s in range(8):
        pt.append(e.i(f"buffer_load_dwordx4 {vr(16+4*s, 4)}, v3, s[16:19], s23 offen"))
        if s < 7: e.i(f"s_add_u32 s23, s23, {G.PART_SRC}")
    e.i("s_movk_i32 s34, 4608")
    e.i(f"s_movk_i32 s35, {G.WS_STATS}")
    e.i("buffer_load_dwordx2 v[48:49], v9, s[4:7], 0 offen")
    e.i("buffer_load_dwordx2 v[50:51], v9, s[4:7], s34 offen")
    e.i("buffer_load_dwordx2 v[52:53], v11, s[16:19], s35 offen")
    e.i("buffer_load_dwordx2 v[54:55], v11, s[16:19], s35 offen offset:32")
    last = e.i("buffer_load_dwordx2 v[56:57], v12, s[8:11], 0 offen")
    e.i("s_mov_b32 s36, 0x00003f80")
    e.i("s_mov_b32 s37, 0x3f800000")
    O = 0
    for s in range(4):
        e.wait(vm=pt[s])
        for j in range(8):
            e.i(f"v_dot2_f32_bf16 v{O+j}, v{16+4*s+(j>>1)}, s{36+(j&1)}, " + ("0" if s == 0 else f"v{O+j}"))
    Y = 16
    for s in range(4, 8):
        e.wait(vm=pt[s])
        for j in range(8):
            e.i(f"v_dot2_f32_bf16 v{Y+j}, v{16+4*s+(j>>1)}, s{36+(j&1)}, " + ("0" if s == 4 else f"v{Y+j}"))
    e.wait(vm=last)
    X = 24; W = 32; Dk = 40; Tm = 44
    def unpack(dst, src, n):
        for j in range(n):
            if j & 1: e.i(f"v_and_b32 v{dst+j}, 0xffff0000, v{src+(j>>1)}")
            else: e.i(f"v_lshlrev_b32 v{dst+j}, 16, v{src+(j>>1)}")
    def rnd(base):
        for k in range(4): e.i(f"v_cvt_pk_bf16_f32 v{Tm+k}, v{base+2*k}, v{base+2*k+1}")
        unpack(base, Tm, 8)
    unpack(X, 48, 8)
    unpack(Dk, 56, 4)
    for j in range(8): e.i(f"v_sub_f32 v{W+j}, v{X+j}, v{52+2*(j>>2)}")
    rnd(W)
    for j in range(8): e.i(f"v_mul_f32 v{W+j}, v{W+j}, v{53+2*(j>>2)}")
    rnd(W)
    for j in range(8): e.i(f"v_mul_f32 v{W+j}, v{W+j}, v{Dk+(j&3)}")
    rnd(W)
    for j in range(8): e.i(f"v_add_f32 v{Y+j}, v{Y+j}, v{W+j}")
    rnd(O)
    for j in range(8): e.i(f"v_mul_f32 v{W+j}, {f32(-G.LOG2E)}, v{O+j}")
    for j in range(8): e.i(f"v_exp_f32 v{W+j}, v{W+j}")
    for j in range(8): e.i(f"v_add_f32 v{W+j}, 1.0, v{W+j}")
    for j in range(8): e.i(f"v_rcp_f32 v{W+j}, v{W+j}")
    for j in range(8): e.i(f"v_mul_f32 v{O+j}, v{O+j}, v{W+j}")
    rnd(O)
    for j in range(8): e.i(f"v_fma_f32 v{X+j}, v{Y+j}, v{O+j}, v{X+j}")
    e.i("s_movk_i32 s34, 9216")
    e.i(f"buffer_store_dwordx4 {vr(X, 4)}, v10, s[12:15], 0 offen")
    e.i(f"buffer_store_dwordx4 {vr(X+4, 4)}, v10, s[12:15], s34 offen")
    e.label("L_k2_end")
    e.i("s_endpgm")
```

```python
import copy, math
from em import uid

def ssm(e, opt, G):
    vr, f32, srd, ptr, xf = G.vr, G.f32, G.srd, G.ptr, G.xf
    sW, sRG, sCG, sMT, sGRP, sT = G.sW, G.sRG, G.sCG, G.sMT, G.sGRP, G.sT
    S_A, S_B, S_WS, S_AUX = G.S_A, G.S_B, G.S_WS, G.S_AUX
    sA0, sB0, sM0W, sTAG1, sTAG2, sSPIN, sPART = G.sA0, G.sB0, G.sM0W, G.sTAG1, G.sTAG2, G.sSPIN, G.sPART
    SLOT, XF = G.SLOT, G.XF
    L_TAB, L_WAG, L_RSTD = G.L_TAB, G.L_WAG, G.L_RSTD
    vL16 = 0; vD = 1; vRA = 2; vTB = 4; vTQ = 5; vWG = 6; vRS = 7; vPRE = 8
    FR = 16; ACC = 32
    sAGG = 39; sMHI = 40; sMODD = 58
    E_P8, E_N, E_LAM, E_COEF = 0, 17, 21, 22
    slow = []
    e.i("v_mul_u32_u24 v32, 456, v31")
    e.i("v_lshrrev_b32 v32, 16, v32")
    e.i("v_mul_u32_u24 v33, 144, v32")
    e.i("v_sub_u32 v33, v31, v33")
    e.i("v_lshlrev_b32 v34, 1, v33")
    e.i(f"s_mul_i32 s{sT+4}, s{sGRP}, 288")
    ptk = []
    for k, pi in enumerate((1, 2, 7)):
        srd(e, S_AUX, ptr(pi), 1152)
        ptk.append(e.i(f"buffer_load_ushort v{36+k}, v34, s[{S_AUX}:{S_AUX+3}], s{sT+4} offen"))
    xt, raw = G.xloads(e)
    e.i(f"s_bitcmp1_b32 s{sW}, 1")
    for d, a, b in ((S_A, 3, 4), (S_B, 5, 6)):
        e.i(f"s_cselect_b32 s{d}, s{ptr(b)}, s{ptr(a)}")
        e.i(f"s_cselect_b32 s{d+1}, s{ptr(b)+1}, s{ptr(a)+1}")
        e.i(f"s_mov_b32 s{d+2}, {576*1152}")
        e.i(f"s_mov_b32 s{d+3}, 0x20000")
    e.i(f"s_and_b32 s{sT+5}, s{sW}, 1")
    e.i(f"s_lshl_b32 s{sT+6}, s{sT+5}, 2")
    e.i("v_lshrrev_b32 v10, 1, v5")
    e.i(f"v_add_u32 v10, s{sT+6}, v10")
    e.i("v_xor_b32 v10, v10, v6")
    e.i(f"v_mul_u32_u24 v{vD}, 1152, v5")
    e.i(f"v_lshl_add_u32 v{vD}, v10, 4, v{vD}")
    e.i(f"s_lshl_b32 s{sT+6}, s{sCG}, 1")
    e.i(f"s_add_u32 s{sT+6}, s{sT+6}, s{sT+5}")
    e.i(f"s_mul_i32 s{sT+6}, s{sT+6}, {8*1152}")
    e.i(f"s_mul_i32 s{sT+7}, s{sGRP}, {144*1152}")
    e.i(f"s_add_u32 s{sA0}, s{sT+6}, s{sT+7}")
    e.i(f"s_lshl_b32 s{sT+7}, s{sGRP}, 8")
    e.i(f"s_add_u32 s{sB0}, s{sT+6}, s{sT+7}")
    dma_tok = {}
    def dma(e, g):
        if g >= 33: return
        slot = g % 5
        if g < 15:
            u, th = divmod(g, 3)
            e.i(f"s_add_u32 s{sT+7}, s{sA0}, {u*32*1152 + th*384}"); S = S_A
        else:
            e.i(f"s_add_u32 s{sT+7}, s{sB0}, {(g-15)*32*1152}"); S = S_B
        for j in range(3):
            e.i(f"s_add_u32 m0, s{sM0W}, {slot*SLOT + j*896}")
            dma_tok[g] = e.i(f"buffer_load_dwordx4 v{vD}, s[{S}:{S+3}], s{sT+7} offen offset:{j*128} lds")
    dma(e, 0); dma(e, 1)
    e.i(f"s_mov_b32 s{G.sSTG}, {2*SLOT}")

    def tables():
        e.i("v_mov_b32 v40, 0"); e.i("v_mov_b32 v41, 0"); e.i("v_mov_b32 v42, 0"); e.i("v_mov_b32 v43, 0")
        e.i("v_lshlrev_b32 v44, 4, v31")
        e.i(f"v_add_u32 v44, {L_WAG}, v44")
        e.i("ds_write_b128 v44, v[40:43]")
        e.i("v_cmp_gt_u32 vcc, 48, v31")
        e.i(f"s_and_saveexec_b64 s[{sT+6}:{sT+7}], vcc")
        e.i("ds_write_b128 v44, v[40:43] offset:8192")
        e.i(f"s_mov_b64 exec, s[{sT+6}:{sT+7}]")
        e.wait(vm=ptk[2])
        for k in range(3): e.i(f"v_lshlrev_b32 v{36+k}, 16, v{36+k}")
        e.i(f"v_mul_f32 v38, {f32(G.LOG2E)}, v38")
        e.i("v_exp_f32 v38, v38")
        e.i("v_cvt_pk_bf16_f32 v38, v38, v38")
        e.i("v_and_b32 v38, 0xffff0000, v38")
        e.i("v_mul_f32 v40, v38, v36")
        e.i("v_mul_f32 v41, v38, v37")
        e.i(f"v_mul_f32 v40, {f32(G.LOG2E)}, v40")
        e.i(f"v_mul_f32 v41, {f32(1/(2*math.pi))}, v41")
        e.i("v_mul_f32 v42, v36, v36")
        e.i("v_fma_f32 v42, v37, v37, v42")
        e.i("v_rcp_f32 v42, v42")
        e.i("v_add_f32 v42, v42, v42")
        e.i("v_mul_f32 v36, v36, v42")
        e.i("v_mul_f32 v37, v37, v42")
        e.i("v_lshlrev_b32 v43, 6, v32")
        e.i("v_cvt_f32_u32 v43, v43")
        e.i(f"v_cmp_eq_u32 s[{sT+4}:{sT+5}], 2, v32")
        e.i(f"v_mul_u32_u24 v44, {8*1152}, v32")
        e.i("v_lshl_add_u32 v44, v33, 3, v44")
        e.i(f"v_add_u32 v44, {L_TAB}, v44")
        e.i("v_cmp_gt_u32 vcc, 3, v32")
        e.i(f"s_and_saveexec_b64 s[{sT+6}:{sT+7}], vcc")
        special = [128.0, 0.0, 512.0, 1024.0, 1536.0, 1.0, 1.0, 0.0]
        for k in range(8):
            b = 48 + (k & 1) * 8
            e.i(f"v_add_f32 v{b}, {f32(8.0*k)}, v43")
            e.i(f"v_mov_b32 v{b+1}, {f32(special[k])}")
            e.i(f"v_cndmask_b32 v{b}, v{b}, v{b+1}, s[{sT+4}:{sT+5}]")
            e.i(f"v_mul_f32 v{b+1}, v{b}, v40")
            e.i(f"v_mul_f32 v{b+2}, v{b}, v41")
            e.i(f"v_exp_f32 v{b+1}, v{b+1}")
            e.i(f"v_fract_f32 v{b+2}, v{b+2}")
            e.i(f"v_cos_f32 v{b+4}, v{b+2}")
            e.i(f"v_sin_f32 v{b+5}, v{b+2}")
            e.i(f"v_mul_f32 v{b+4}, v{b+4}, v{b+1}")
            e.i(f"v_mul_f32 v{b+5}, v{b+5}, v{b+1}")
            if k == 6:
                e.i(f"v_add_f32 v{b+1}, -1.0, v{b+4}")
                e.i(f"v_mul_f32 v{b+2}, v{b+1}, v36")
                e.i(f"v_fma_f32 v{b+2}, v{b+5}, v37, v{b+2}")
                e.i(f"v_mul_f32 v{b+3}, v{b+5}, v36")
                e.i(f"v_fma_f32 v{b+3}, -v{b+1}, v37, v{b+3}")
                e.i(f"v_cndmask_b32 v{b+4}, v{b+4}, v{b+2}, s[{sT+4}:{sT+5}]")
                e.i(f"v_cndmask_b32 v{b+5}, v{b+5}, v{b+3}, s[{sT+4}:{sT+5}]")
            e.i(f"ds_write_b64 v44, {vr(b+4, 2)} offset:{k*1152}")
        e.i(f"s_mov_b64 exec, s[{sT+6}:{sT+7}]")
    def stat_hook(T):
        e.i("v_rcp_f32 v35, v20")
        e.i("v_lshrrev_b32 v23, 1, v15")
        e.i(f"v_add_u32 v23, {L_RSTD}, v23")
        e.i(f"ds_write_b32 v23, v35 offset:{T*16}")
        e.i(f"s_cmp_lg_u32 s{sGRP}, 0")
        lab = uid("L_skip"); e.skip("s_cbranch_scc1", lab)
        e.opt = True
        e.i("v_mov_b32 v34, v21")
        e.i(f"s_lshl_b32 s{sT+7}, s{sMT}, 10")
        e.i(f"s_add_u32 s{sT+7}, s{sT+7}, {G.WS_STATS}")
        e.i(f"buffer_store_dwordx2 v[34:35], v15, s[{S_WS}:{S_WS+3}], s{sT+7} offen offset:{T*32} sc1")
        e.opt = False
        e.label(lab)
    G.ln_stage(e, xt, raw, opt, side_work=tables, stat_hook=stat_hook)
    e.i("v_lshrrev_b32 v32, 1, v13")
    e.i("v_xor_b32 v33, v32, v14")
    e.i("v_and_b32 v34, 7, v13")
    e.i("v_lshlrev_b32 v34, 7, v34")
    e.i("v_lshrrev_b32 v35, 3, v13")
    e.i("v_mul_u32_u24 v35, 3072, v35")
    e.i(f"s_mul_i32 s{sT+4}, s{sCG}, 12288")
    e.i(f"v_add3_u32 v34, v34, v35, s{sT+4}")
    e.i(f"v_lshl_add_u32 v{vRA}, v33, 4, v34")
    e.i(f"v_xor_b32 v{vRA+1}, 64, v{vRA}")
    e.i(f"s_lshl_b32 s{sT+5}, s{sCG}, 7")
    e.i(f"s_add_u32 s{sT+5}, s{sT+5}, {L_TAB}")
    e.i(f"v_lshl_add_u32 v{vTB}, v13, 3, s{sT+5}")
    e.i(f"v_mul_u32_u24 v{vTQ}, 1152, v14")
    e.i(f"v_add_u32 v{vTQ}, v{vTQ}, v{vTB}")
    e.i(f"s_mul_i32 s{sT+5}, s{sCG}, 896")
    e.i(f"s_lshl_b32 s{sT+6}, s{sRG}, 7")
    e.i(f"s_add_u32 s{sT+5}, s{sT+5}, s{sT+6}")
    e.i(f"s_add_u32 s{sT+5}, s{sT+5}, {L_WAG}")
    e.i(f"v_lshl_add_u32 v{vWG}, v13, 3, s{sT+5}")
    e.i(f"s_add_u32 s{sT+6}, s{sT+6}, {L_RSTD}")
    e.i(f"v_lshl_add_u32 v{vRS}, v14, 5, s{sT+6}")
    e.i(f"s_mov_b32 s{sMHI}, 0"); e.i(f"s_mov_b32 s{sMHI+1}, -1")
    e.i(f"s_mov_b32 s{sMODD}, 0xffff0000"); e.i(f"s_mov_b32 s{sMODD+1}, 0xffff0000")
    e.i(f"s_mul_i32 s{sAGG}, s{sGRP}, 9")
    e.i(f"s_add_u32 s{sAGG}, s{sAGG}, s{sCG}")
    e.i(f"s_lshl_b32 s{sAGG}, s{sAGG}, 12")
    e.i(f"s_add_u32 s{sAGG}, s{sAGG}, {G.WS_AGG}")
    e.wait_all(vm=False)
    G.tags(e)
    G.stamp(e, opt, 1)

    D = 4
    rd_tok = {}
    cur_set = [0]
    def read_fragA(e, n):
        if n >= 15 * 12: return
        g, k = divmod(n, 12)
        slot = g % 5; st, odd = divmod(slot, 2)
        if st != cur_set[0]:
            for b in range(2): e.i(f"v_add_u32 v{vRA+b}, {((st-cur_set[0])*2*SLOT) & 0xffffffff}, v{vRA+b}")
            cur_set[0] = st
        ks, mx = divmod(k, 2)
        rd_tok[n] = e.i(f"ds_read_b128 {vr(FR+(n%D)*4, 4)}, v{vRA+(ks&1)} offset:{odd*SLOT + mx*6144 + (ks>>1)*1024}")
    acc = lambda r: ACC + 16 * r
    pre = lambda r: (vPRE + 2 * r) if r < 4 else (XF + 140)
    def tab(F, e, dst, areg, entry, r, toks, key):
        def cb(t): toks[key] = t
        F.add(f"ds_read_b64 {vr(dst, 2)}, v{areg} offset:{entry*1152 + r*256}", 2, cb)
    def wl(F, e, toks, key): F.add(lambda: e.wait(lg=toks[key]), 0)
    def cfma(F, d, m, s, a):
        F.add(f"v_fma_f32 v{d}, v{m}, v{s}, v{a}")
        F.add(f"v_fma_f32 v{d+1}, v{m}, v{s+1}, v{a+1}")
        F.add(f"v_fma_f32 v{d}, -v{m+1}, v{s+1}, v{d}")
        F.add(f"v_fma_f32 v{d+1}, v{m+1}, v{s}, v{d+1}")
    def part1(F, e, r, TB, toks):
        A = acc(r)
        def cb(t): toks["rs"] = t
        F.add(f"ds_read_b128 {vr(TB, 4)}, v{vRS}", 2)
        F.add(f"ds_read_b128 {vr(TB+4, 4)}, v{vRS} offset:16", 2)
        tab(F, e, TB + 8, vTB, G_E["coef"], r, toks, "c")
        tab(F, e, TB + 10, vTB, G_E["lam"], r, toks, "l")
        F.add("s_nop 0", 12)
        wl(F, e, toks, "l")
        for t in range(8):
            F.add(f"v_mul_f32 v{A+t}, v{A+t}, v{TB+t}")
            F.add(f"v_mul_f32 v{A+8+t}, v{A+8+t}, v{TB+t}")
        tab(F, e, TB + 0, vTB, E_P8 + 1, r, toks, "p1")
        tab(F, e, TB + 2, vTB, E_P8 + 2, r, toks, "p2")
        for t in range(8):
            x = TB + 12 + (t & 1) * 2
            F.add(f"v_mul_f32 v{x}, v{A+t}, v{TB+8}")
            F.add(f"v_mul_f32 v{x+1}, v{A+t}, v{TB+9}")
            F.add(f"v_fma_f32 v{A+t}, -v{A+8+t}, v{TB+9}, v{x}")
            F.add(f"v_fma_f32 v{A+8+t}, v{A+8+t}, v{TB+8}, v{x+1}")
        L = TB + 10
        sr, si = A, A + 8
        for t in range(1, 8):
            d = TB + 12 + (t & 1) * 2
            F.add(f"v_fma_f32 v{d}, v{L}, v{sr}, v{A+t}")
            F.add(f"v_fma_f32 v{d+1}, v{L}, v{si}, v{A+8+t}")
            F.add(f"v_fma_f32 v{d}, -v{L+1}, v{si}, v{d}")
            F.add(f"v_fma_f32 v{d+1}, v{L+1}, v{sr}, v{d+1}")
            sr, si = d, d + 1
        x = TB + 14; y = TB + 12; u = TB + 4; v = TB + 6; g = TB + 8
        F.add(f"v_mov_b32 v{y}, v{x}"); F.add(f"v_mov_b32 v{y+1}, v{x+1}")
        wl(F, e, toks, "p2")
        F.add(f"v_permlane16_swap_b32 v{x}, v{y}"); F.add(f"v_permlane16_swap_b32 v{x+1}, v{y+1}")
        cfma(F, u, TB + 0, x, y)
        F.add(f"v_mov_b32 v{v}, v{u}"); F.add(f"v_mov_b32 v{v+1}, v{u+1}")
        F.add(f"v_permlane32_swap_b32 v{u}, v{v}"); F.add(f"v_permlane32_swap_b32 v{u+1}, v{v+1}")
        cfma(F, v, TB + 2, u, v)
        def cbw(t): toks["w"] = t
        F.add(f"ds_write_b64 v{vWG}, {vr(v, 2)} offset:{r*1792 + 384}", 4, cbw)
        for c in range(2): F.add(f"v_cndmask_b32 v{g+c}, 0, v{u+c}, s[{sMHI}:{sMHI+1}]")
        cfma(F, x, TB + 0, g, x)
        for c in range(2): F.add(f"v_cndmask_b32 v{pre(r)+c}, v{g+c}, v{x+c}, s[{sMODD}:{sMODD+1}]")
    def part2(F, e, r, TB, toks):
        for k in range(4):
            F.add(f"ds_read_b64 {vr(TB+2*k, 2)}, v{vWG} offset:{r*1792 + k*128}", 2)
        tab(F, e, TB + 8, vTB, E_P8 + 4, r, toks, "p4")
        tab(F, e, TB + 10, vTQ, E_P8, r, toks, "kq")
        F.add("s_nop 0", 12)
        wl(F, e, toks, "kq")
        cfma(F, TB + 2, TB + 8, TB + 0, TB + 2)
        cfma(F, TB + 4, TB + 8, TB + 2, TB + 4)
        cfma(F, TB + 6, TB + 8, TB + 4, TB + 6)
        cfma(F, pre(r), TB + 10, TB + 4, pre(r))
        def pub():
            e.i(f"s_cmp_lg_u32 s{sRG}, 3")
            lab = uid("L_skip"); e.skip("s_cbranch_scc1", lab)
            e.opt = True
            e.i(f"v_mov_b32 v{TB+12}, v{TB+6}")
            e.i(f"v_mov_b32 v{TB+13}, s{sTAG1}")
            e.i(f"v_mov_b32 v{TB+14}, v{TB+7}")
            e.i(f"v_mov_b32 v{TB+15}, s{sTAG2}")
            e.i(f"s_lshl_b32 s{sT+6}, s{sMT}, 8")
            e.i(f"s_add_u32 s{sT+6}, s{sT+6}, s{sAGG}")
            e.i(f"s_add_u32 s{sT+6}, s{sT+6}, {r*8192}")
            e.i("s_mov_b64 exec, 0xffff")
            e.i(f"buffer_store_dwordx4 {vr(TB+12, 4)}, v{vL16}, s[{S_WS}:{S_WS+3}], s{sT+6} offen sc1")
            e.i("s_mov_b64 exec, -1")
            e.i("s_nop 0")
            e.opt = False
            e.label(lab)
        F.add(pub, 4)
    G_E = {"coef": E_COEF, "lam": E_LAM}

    etok = [None]
    def stageA(e, F, g, toks, compute=True):
        r, th = divmod(g, 3)
        if th == 2 and r >= 1:
            F.flush(); e.wait(lg=toks["w"])
        if th == 0: F.flush()
        e.wait(vm=dma_tok[g + 1])
        e.i("s_barrier")
        if g == 0:
            for gg in (2, 3, 4): dma(e, gg)
            for n in range(D): read_fragA(e, n)
            etok[0] = G.epoch_arrive(e, vPRE + 7)
        elif g + 4 <= 16: dma(e, g + 4)
        if g == 8: G.epoch_bump(e, vPRE + 7, etok[0])
        TB = acc(4) if r < 4 else XF
        if th == 2 and r >= 1: part2(F, e, r - 1, TB, toks)
        if not compute:
            if th == 0: part1(F, e, r - 1, TB, toks)
            F.flush(); return
        for k in range(12):
            n = g * 12 + k
            e.wait(lg=rd_tok[n])
            ks, mx = divmod(k, 2); ksg = th * 6 + ks
            for T in range(2):
                d = vr(acc(r) + mx * 8 + T * 4, 4)
                e.i(f"v_mfma_f32_16x16x32_bf16 {d}, {vr(xf(T, ksg), 4)}, {vr(FR+(n%D)*4, 4)}, " + ("0" if ksg == 0 else d))
                if T == 1: read_fragA(e, n + D)
                F.step(opt.get("sbudget", 8))
            if th == 0 and r >= 1 and k == (1 if r < 4 else 8): part1(F, e, r - 1, TB, toks)
    F = G.Filler(e); toks = {}
    for g in range(12): stageA(e, F, g, toks)
    F.flush()

    GB = XF + 16
    vGO = XF + 96
    vEX = XF + 100
    vMU = XF + 108
    vHW = XF + 109
    vBAD = XF + 111
    CT = XF + 112
    HT = 2 * SLOT
    def resolve_setup(e):
        e.i(f"v_lshrrev_b32 v{CT}, 4, v{vL16}")
        e.i(f"v_and_b32 v{CT+1}, 15, v{CT}")
        e.i(f"v_lshrrev_b32 v{CT+2}, 4, v{CT}")
        e.i(f"v_lshlrev_b32 v{CT+3}, 2, v{CT+2}")
        e.i(f"v_sub_u32 v{CT+3}, s{sMT}, v{CT+3}")
        e.i(f"v_mov_b32 v{CT+5}, 0x7ff00000")
        e.i(f"v_lshlrev_b32 v{CT+6}, 4, v{CT+1}")
        for i in range(4):
            e.i(f"v_subrev_u32 v{CT+4}, {i+1}, v{CT+3}")
            e.i(f"v_cmp_le_i32 vcc, 0, v{CT+4}")
            e.i(f"v_lshl_add_u32 v{CT+4}, v{CT+4}, 8, v{CT+6}")
            e.i(f"v_mov_b32 v{vEX+2*i}, s{sTAG1}")
            e.i(f"v_mov_b32 v{vEX+2*i+1}, s{sTAG2}")
            e.i(f"v_cndmask_b32 v{vGO+i}, v{CT+5}, v{CT+4}, vcc")
            e.i(f"v_cndmask_b32 v{vEX+2*i}, 0, v{vEX+2*i}, vcc")
            e.i(f"v_cndmask_b32 v{vEX+2*i+1}, 0, v{vEX+2*i+1}, vcc")
        e.i(f"s_mul_i32 s{sT+4}, s{sRG}, 4608")
        e.i(f"v_add_u32 v{vMU}, s{sT+4}, v{vTQ}")
        e.i(f"v_lshrrev_b32 v{CT+3}, 3, v{CT+1}")
        e.i(f"v_and_b32 v{CT+4}, 6, v{CT+1}")
        e.i(f"v_xor_b32 v{CT+3}, v{CT+3}, v{CT+4}")
        e.i(f"v_lshlrev_b32 v{CT+4}, 1, v{CT+2}")
        e.i(f"v_xor_b32 v{CT+3}, v{CT+3}, v{CT+4}")
        e.i(f"v_lshlrev_b32 v{CT+3}, 3, v{CT+3}")
        e.i(f"v_lshl_add_u32 v{CT+3}, v{CT+1}, 6, v{CT+3}")
        e.i(f"s_mul_i32 s{sT+4}, s{sRG}, 9")
        e.i(f"s_add_u32 s{sT+4}, s{sT+4}, s{sCG}")
        e.i(f"s_lshl_b32 s{sT+4}, s{sT+4}, 11")
        e.i(f"s_add_u32 s{sT+4}, s{sT+4}, {HT}")
        e.i(f"v_add_u32 v{vHW}, s{sT+4}, v{CT+3}")
        e.i(f"v_xor_b32 v{vHW+1}, 8, v{vHW}")
    def gather(e, rs):
        t = None
        for r in rs:
            e.i(f"s_add_u32 s{sT+6}, s{sAGG}, {r*8192}")
            for i in range(4):
                t = e.i(f"buffer_load_dwordx4 {vr(GB+16*r+4*i, 4)}, v{vGO+i}, s[{S_WS}:{S_WS+3}], s{sT+6} offen sc1")
        return t
    def gtest(e, rs):
        first = True
        for r in rs:
            for i in range(4):
                b = GB + 16 * r + 4 * i
                e.i(f"v_xor_b32 v{b+1}, v{b+1}, v{vEX+2*i}")
                e.i(f"v_xor_b32 v{b+3}, v{b+3}, v{vEX+2*i+1}")
                e.i(f"v_or3_b32 v{vBAD}, v{b+1}, v{b+3}, " + ("0" if first else f"v{vBAD}")); first = False
        e.i(f"v_cmp_ne_u32 vcc, 0, v{vBAD}")
        e.i("s_cmp_eq_u64 vcc, 0")
    def gcheck(e, rs, tok):
        name = uid("g")
        e.wait(vm=tok)
        gtest(e, rs)
        e.i(f"s_cbranch_scc0 L_slow_{name}")
        e.label(f"L_back_{name}")
        def out(em):
            em.label(f"L_slow_{name}")
            em.i(f"s_mov_b32 s{sSPIN}, 0x4000")
            em.label(f"L_spin_{name}")
            em.i("s_sleep 1")
            gather(em, rs)
            em.i("s_waitcnt vmcnt(0)")
            gtest(em, rs)
            em.i(f"s_cbranch_scc1 L_back_{name}")
            em.i(f"s_sub_u32 s{sSPIN}, s{sSPIN}, 1")
            em.i(f"s_cmp_lg_u32 s{sSPIN}, 0")
            em.i(f"s_cbranch_scc1 L_spin_{name}")
            em.i(f"s_branch L_back_{name}")
        slow.append(out)
    class Q:
        def __init__(s): s.q = []
        def add(s, t, c=None, cb=None): s.q.append((t, cb))
    def final_ops(e, r, C, toks):
        F = Q(); A = acc(r); B = GB + 16 * r
        tab(F, e, C + 0, vTB, E_P8 + 16, r, toks, ("a", r))
        tab(F, e, C + 2, vTQ, E_N, r, toks, ("b", r))
        tab(F, e, C + 4, vMU, E_P8, r, toks, ("c", r))
        tab(F, e, C + 6, vTB, E_LAM, r, toks, ("d", r))
        for i in range(4): F.add(f"v_mov_b32 v{B+4*i+1}, v{B+4*i+2}")
        wl(F, e, toks, ("d", r))
        cfma(F, B + 8, C, B + 12, B + 8)
        cfma(F, B + 4, C, B + 8, B + 4)
        cfma(F, B + 0, C, B + 4, B + 0)
        s = C + 8; c2 = C + 10
        F.add(f"v_mul_f32 v{s}, v{C+2}, v{B}"); F.add(f"v_mul_f32 v{s+1}, v{C+2}, v{B+1}")
        F.add(f"v_fma_f32 v{s}, -v{C+3}, v{B+1}, v{s}"); F.add(f"v_fma_f32 v{s+1}, v{C+3}, v{B}, v{s+1}")
        for sw in ("16", "32"):
            F.add(f"v_mov_b32 v{c2}, v{s}"); F.add(f"v_mov_b32 v{c2+1}, v{s+1}")
            F.add(f"v_permlane{sw}_swap_b32 v{s}, v{c2}"); F.add(f"v_permlane{sw}_swap_b32 v{s+1}, v{c2+1}")
            F.add(f"v_add_f32 v{s}, v{s}, v{c2}"); F.add(f"v_add_f32 v{s+1}, v{s+1}, v{c2+1}")
        cfma(F, pre(r), C + 4, s, pre(r))
        L = C + 6; sr, si = pre(r), pre(r) + 1
        for t in range(8):
            F.add(f"v_fma_f32 v{A+t}, v{L}, v{sr}, v{A+t}")
            F.add(f"v_fma_f32 v{A+8+t}, v{L}, v{si}, v{A+8+t}")
            F.add(f"v_fma_f32 v{A+t}, -v{L+1}, v{si}, v{A+t}")
            F.add(f"v_fma_f32 v{A+8+t}, v{L+1}, v{sr}, v{A+8+t}")
            sr, si = A + t, A + 8 + t
        for k in range(4): F.add(f"v_cvt_pk_bf16_f32 v{B+k}, v{A+2*k}, v{A+2*k+1}")
        for k in range(4): F.add(f"v_cvt_pk_bf16_f32 v{B+4+k}, -v{A+8+2*k}, -v{A+8+2*k+1}")
        return F.q
    def run_merged(e, lists):
        while any(lists):
            for l in lists:
                if l:
                    t, cb = l.pop(0)
                    if callable(t): t()
                    else:
                        tok = e.i(t)
                        if cb: cb(tok)
    def finals(e, rs, toks):
        rs = list(rs)
        while rs:
            pair = rs[:2]; rs = rs[2:]
            run_merged(e, [final_ops(e, r, CT + 14 * k, toks) for k, r in enumerate(pair)])
    def ht_write(e, rs):
        for r in rs:
            B = GB + 16 * r
            for mx in range(2):
                for T in range(2):
                    e.i(f"ds_write_b64 v{vHW+T}, {vr(B+4*mx+2*T, 2)} offset:{r*4096 + mx*1024}")

    e.i(f"s_cmp_eq_u32 s{sCG}, 1")
    e.i("s_cbranch_scc1 L_ssm_cg1")
    e1 = copy.deepcopy(e); e1.lines = []
    dsave = dict(dma_tok)
    F = G.Filler(e)
    for g in range(12, 15): stageA(e, F, g, toks)
    F.flush()
    G.stamp(e, opt, 2)
    resolve_setup(e)
    gt = gather(e, range(4))
    part1(F, e, 4, XF, toks); F.flush()
    e.wait_all(vm=False)
    e.i("s_barrier")
    part2(F, e, 4, XF, toks); F.flush()
    gcheck(e, range(4), gt)
    finals(e, range(2), toks)
    gt = gather(e, [4])
    finals(e, range(2, 4), toks)
    ht_write(e, range(4))
    gcheck(e, [4], gt)
    finals(e, [4], toks)
    ht_write(e, [4])
    e.wait_all()
    e.i("s_branch L_ssm_join")
    d0 = dict(dma_tok); dma_tok.clear(); dma_tok.update(dsave)
    e1.label("L_ssm_cg1")
    F1 = G.Filler(e1); toks1 = dict(toks)
    stageA(e1, F1, 12, toks1, compute=False)
    resolve_setup(e1)
    gt = gather(e1, range(3))
    stageA(e1, F1, 13, toks1, compute=False)
    stageA(e1, F1, 14, toks1, compute=False)
    G.stamp(e1, opt, 2)
    gcheck(e1, range(3), gt)
    finals(e1, range(3), toks1)
    gt = gather(e1, [3])
    e1.wait_all(vm=False)
    e1.i("s_barrier")
    ht_write(e1, range(3))
    gcheck(e1, [3], gt)
    finals(e1, [3], toks1)
    ht_write(e1, [3])
    e1.wait_all()
    e.lines += e1.lines
    e.nops = e1.nops + e.nops
    e.label("L_ssm_join")
    e.drain(4)
    e.i("s_barrier")
    HF = lambda u, T: ACC + u * 8 + T * 4
    t0 = XF
    e.i(f"v_lshrrev_b32 v{t0}, 4, v{vL16}")
    e.i(f"v_lshrrev_b32 v{t0+1}, 4, v{t0}")
    e.i(f"v_bfe_u32 v{t0+2}, v{t0}, 2, 2")
    e.i(f"v_and_b32 v{t0+3}, 3, v{t0}")
    e.i(f"v_lshl_add_u32 v{t0+4}, v{t0+1}, 3, v{t0+2}")
    e.i(f"v_lshlrev_b32 v{t0+5}, 1, v{t0+3}")
    e.i(f"v_and_b32 v{t0+6}, 1, v{t0+1}")
    e.i(f"v_xor_b32 v{t0+5}, v{t0+5}, v{t0+6}")
    e.i(f"v_and_b32 v{t0+6}, 2, v{t0+2}")
    e.i(f"v_xor_b32 v{t0+5}, v{t0+5}, v{t0+6}")
    e.i(f"v_lshlrev_b32 v{t0+5}, 3, v{t0+5}")
    e.i(f"v_lshl_add_u32 v{t0+5}, v{t0+4}, 6, v{t0+5}")
    e.i(f"s_mul_i32 s{sT+4}, s{sRG}, {9*2048}")
    e.i(f"s_add_u32 s{sT+4}, s{sT+4}, {HT}")
    e.i(f"v_add_u32 v{t0+8}, s{sT+4}, v{t0+5}")
    e.i(f"v_xor_b32 v{t0+9}, 32, v{t0+8}")
    e.i(f"v_xor_b32 v{t0+10}, 8, v{t0+8}")
    e.i(f"v_xor_b32 v{t0+11}, 40, v{t0+8}")
    for u in range(9):
        for T in range(2):
            for a in range(2):
                e.i(f"ds_read_b64_tr_b16 {vr(HF(u, T)+2*a, 2)}, v{t0+8+2*T+a} offset:{u*2048 + a*256}")
    vRB = XF + 16
    e.i(f"v_and_b32 v{t0+2}, 15, v{t0}")
    e.i(f"v_lshrrev_b32 v{t0+3}, 1, v{t0+2}")
    e.i(f"v_and_b32 v{t0+4}, 1, v{t0+1}")
    e.i(f"v_xor_b32 v{t0+3}, v{t0+3}, v{t0+4}")
    e.i(f"v_and_b32 v{t0+4}, 2, v{t0+1}")
    e.i(f"v_lshrrev_b32 v{t0+5}, 3, v{t0+2}")
    e.i(f"v_add_u32 v{t0+4}, v{t0+4}, v{t0+5}")
    e.i(f"v_mul_u32_u24 v{t0+4}, 3072, v{t0+4}")
    e.i(f"v_and_b32 v{t0+5}, 7, v{t0+2}")
    e.i(f"v_lshl_add_u32 v{t0+4}, v{t0+5}, 7, v{t0+4}")
    e.i(f"s_mul_i32 s{sT+4}, s{sCG}, 12288")
    for b in range(4):
        e.i(f"s_add_u32 s{sT+5}, s{sGRP}, {b}")
        e.i(f"s_and_b32 s{sT+6}, s{sT+5}, 3")
        e.i(f"s_lshl_b32 s{sT+6}, s{sT+6}, 1")
        e.i(f"s_lshr_b32 s{sT+5}, s{sT+5}, 2")
        e.i(f"s_lshl_b32 s{sT+5}, s{sT+5}, 10")
        e.i(f"s_add_u32 s{sT+5}, s{sT+5}, s{sT+4}")
        e.i(f"v_xor_b32 v{vRB+b}, s{sT+6}, v{t0+3}")
        e.i(f"v_lshl_add_u32 v{vRB+b}, v{vRB+b}, 4, v{t0+4}")
        e.i(f"v_add_u32 v{vRB+b}, s{sT+5}, v{vRB+b}")
    for st in (1, 2):
        for b in range(4): e.i(f"v_add_u32 v{vRB+4*st+b}, {st*2*SLOT}, v{vRB+b}")
    e.i(f"s_lshl_b32 s{sT+4}, s{sMT}, 2")
    e.i(f"s_add_u32 s{sT+4}, s{sT+4}, s{sRG}")
    e.i(f"s_mul_i32 s{sT+4}, s{sT+4}, 36")
    e.i(f"s_add_u32 s{sT+4}, s{sT+4}, s{sCG}")
    e.i(f"s_lshl_b32 s{sT+4}, s{sT+4}, 10")
    e.i(f"s_mul_i32 s{sT+5}, s{sGRP}, {G.PART_SRC}")
    e.i(f"s_add_u32 s{sT+4}, s{sT+4}, s{sT+5}")
    e.i(f"s_add_u32 s{sPART}, s{sT+4}, {G.WS_PART + 4*G.PART_SRC}")
    rdB = {}
    def read_fragB(n):
        if n >= 18 * 9: return
        j, u = divmod(n, 9)
        slot = j % 5; st, odd = divmod(slot, 2)
        rdB[n] = e.i(f"ds_read_b128 {vr(FR+(n%D)*4, 4)}, v{vRB+4*st+(u&3)} offset:{odd*SLOT + (u>>2)*1024}")
    e.wait_all(vm=False)
    for n in range(D): read_fragB(n)
    G.stamp(e, opt, 3)
    YA = XF + 32
    F = G.Filler(e)
    def queue_out(j):
        A = YA + (j & 1) * 8
        for k in range(4): F.add(f"v_cvt_pk_bf16_f32 v{A+k}, v{A+2*k}, v{A+2*k+1}")
        F.add(f"s_add_u32 s{sT+6}, s{sPART}, {j*2048}", 0)
        F.add(f"buffer_store_dwordx4 {vr(A, 4)}, v{vL16}, s[{S_WS}:{S_WS+3}], s{sT+6} offen sc1")
    dma_tok.clear()
    for j in range(18):
        g = 15 + j
        if g + 1 in dma_tok: e.wait(vm=dma_tok[g + 1])
        e.i("s_barrier")
        if j == 0:
            for gg in (17, 18, 19): dma(e, gg)
        else: dma(e, g + 4)
        for u in range(9):
            n = j * 9 + u
            e.wait(lg=rdB[n])
            for T in range(2):
                d = vr(YA + (j & 1) * 8 + T * 4, 4)
                e.i(f"v_mfma_f32_16x16x32_bf16 {d}, {vr(FR+(n%D)*4, 4)}, {vr(HF(u, T), 4)}, " + ("0" if u == 0 else d))
                if T == 1: read_fragB(n + D)
                F.step(8)
            if u == 1 and j >= 1: queue_out(j - 1)
        F.flush()
    queue_out(17); F.flush()
    if opt.get("stamp"):
        e.wait_all()
        G.stamp(e, opt, 4)
        G.stamp_out(e, opt, 5)
    e.i("s_endpgm")
    for o in slow: o(e)
```

```python
import sys, math
sys.path.insert(0, "gen")
from em import Em, uid

NAME = "recurrent_scan__ssm_conv_s5__dense_activation_silu__prompt"
K1 = "s5ffn_main_kernel"
K2 = "s5ffn_fin_kernel"

WS_EPOCH = 0
WS_STATS = 0x1000
WS_FLAGH = 0x10000
WS_AGG = 0x40000
WS_H = 0x100000
WS_PART = 0x1400000
PART_SRC = 16 * 4 * 36 * 1024
WS_USED = WS_PART + 8 * PART_SRC
STAMP = 0x3000000

SLOT = 24576
LDS_TOTAL = 163840
L_STAT = 6 * SLOT + 15360
L_TAB = 5 * SLOT
L_WAG = L_TAB + 27648
L_RSTD = L_WAG + 8960
assert L_RSTD + 512 <= L_STAT

LOG2E = 1.4426950408889634
def f32(x):
    import struct
    return "0x%08x" % struct.unpack("<I", struct.pack("<f", x))[0]

S_X, S_A, S_B, S_WS, S_AUX = 4, 8, 12, 16, 20
sW, sRG, sCG, sMT, sGRP, sSUB = 24, 25, 26, 27, 28, 29
sTAG1, sTAG2 = 30, 31
sA0 = 32
sM0W = 35
sB0 = 36
sHST = 39
sHP = 40
sT = 42
sSELLO, sSELHI, sONES = 50, 51, 52
sSTG = 53
sPART = 54
sFLG = 55
sSPIN = 56
sP = 60
sST = 90

def ptr(i): return sP + 2 * i

def srd(e, d, p, nbytes):
    e.i(f"s_mov_b32 s{d}, s{p}")
    e.i(f"s_mov_b32 s{d+1}, s{p+1}")
    e.i(f"s_mov_b32 s{d+2}, {nbytes}")
    e.i(f"s_mov_b32 s{d+3}, 0x20000")

def vr(a, n): return f"v[{a}:{a+n-1}]"

class Filler:
    def __init__(self, e): self.e = e; self.q = []; self.credit = 0
    def add(self, text, cost=None, cb=None):
        if cost is None:
            op = text.split()[0]
            cost = 8 if op in ("v_exp_f32", "v_rcp_f32", "v_sin_f32", "v_cos_f32", "v_sqrt_f32", "v_log_f32") else 4
        self.q.append((text, cost, cb))
    def _one(self):
        text, cost, cb = self.q.pop(0)
        if callable(text): text()
        else:
            tok = self.e.i(text)
            if cb: cb(tok)
    def step(self, budget):
        if not self.q: self.credit = 0; return
        self.credit += budget
        while self.q and self.credit >= self.q[0][1]:
            self.credit -= self.q[0][1]; self._one()
    def flush(self):
        while self.q: self._one()
        self.credit = 0

XF = 112
def xf(T, ks): return XF + T * 72 + ks * 4
POOL = 48
FR = 32
vL16, vDA, vDB = 0, 1, 2

def prologue(e, opt):
    e.i("s_cmp_ge_u32 s2, 256")
    e.i("s_cbranch_scc1 L_k1_end")
    e.i(f"s_load_dwordx16 s[{sP}:{sP+15}], s[0:1], 0")
    e.i(f"s_load_dwordx8 s[{sP+16}:{sP+23}], s[0:1], 64")
    e.i(f"s_load_dwordx4 s[{sP+24}:{sP+27}], s[0:1], 96")
    e.i(f"s_load_dwordx2 s[{sP+28}:{sP+29}], s[0:1], 112")
    if opt.get("stamp"):
        e.i(f"s_memrealtime s[{sST}:{sST+1}]")
    e.i("v_lshrrev_b32 v3, 6, v0")
    e.i("v_and_b32 v4, 63, v0")
    e.i(f"v_readfirstlane_b32 s{sW}, v3")
    e.i("s_and_b32 s3, s2, 7")
    e.i(f"s_lshr_b32 s{sGRP}, s3, 1")
    e.i(f"s_and_b32 s{sMT}, s3, 1")
    e.i(f"s_lshl_b32 s{sMT}, s{sMT}, 3")
    e.i("s_lshr_b32 s3, s2, 5")
    e.i(f"s_add_u32 s{sMT}, s{sMT}, s3")
    e.i("s_lshr_b32 s3, s2, 3")
    e.i(f"s_and_b32 s{sSUB}, s3, 3")
    e.i(f"s_and_b32 s{sRG}, s{sW}, 3")
    e.i(f"s_lshr_b32 s{sCG}, s{sW}, 2")
    e.i("v_lshrrev_b32 v5, 3, v4")
    e.i("v_and_b32 v6, 7, v4")
    e.i("v_lshrrev_b32 v7, 2, v5")
    e.i("v_and_b32 v8, 3, v5")
    e.i("v_lshl_add_u32 v7, v7, 3, v8")
    e.i("v_mul_u32_u24 v9, 1152, v7")
    e.i("v_lshl_add_u32 v9, v6, 4, v9")
    e.i(f"s_lshl_b32 s{sT}, s{sMT}, 7")
    e.i(f"s_lshl_b32 s{sT+1}, s{sRG}, 5")
    e.i(f"s_add_u32 s{sT}, s{sT}, s{sT+1}")
    e.i(f"s_lshl_b32 s{sT+1}, s{sCG}, 4")
    e.i(f"s_add_u32 s{sT}, s{sT}, s{sT+1}")
    e.i(f"s_mul_i32 s{sT+2}, s{sT}, 1152")
    e.i(f"s_add_u32 s{sT+3}, s{sT+2}, 4608")
    e.i("s_waitcnt lgkmcnt(0)")
    e.i(f"s_load_dword s{sTAG1}, s[{ptr(14)}:{ptr(14)+1}], {WS_EPOCH}")
    srd(e, S_WS, ptr(14), STAMP + 0x100000 if opt.get("stamp") else WS_USED)
    e.i(f"s_mul_i32 s{sM0W}, s{sW}, 3072")
    e.i("v_mov_b32 v31, v0")
    e.i(f"v_lshlrev_b32 v{vL16}, 4, v4")
    e.i(f"s_mov_b32 s{sSELLO}, 0x00003f80")
    e.i(f"s_mov_b32 s{sSELHI}, 0x3f800000")
    e.i(f"s_mov_b32 s{sONES}, 0x3f803f80")

def xloads(e):
    srd(e, S_X, ptr(0), 2048 * 1152)
    raw = lambda T, j: XF + 72 + T * 36 + j * 4
    xt = [[None] * 9 for _ in range(2)]
    for T in range(2):
        for j in range(9):
            xt[T][j] = e.i(f"buffer_load_dwordx4 {vr(raw(T, j), 4)}, v9, s[{S_X}:{S_X+3}], s{sT+2+T} offen offset:{j*128}")
    return xt, raw

def ln_stage(e, xt, raw, opt, side_work=None, stat_hook=None):
    e.i(f"s_mul_i32 s{sT+4}, s{sRG}, 18432")
    e.i(f"s_add_u32 s{sT+4}, s{sT+4}, s{sSTG}")
    e.i("v_xor_b32 v10, v5, v6")
    e.i(f"s_lshl_b32 s{sT+5}, s{sCG}, 7")
    e.i("v_lshlrev_b32 v10, 4, v10")
    e.i("v_lshl_add_u32 v10, v6, 8, v10")
    e.i(f"s_add_u32 s{sT+5}, s{sT+5}, s{sT+4}")
    e.i(f"v_add_u32 v10, s{sT+5}, v10")
    e.i("v_and_b32 v13, 15, v4")
    e.i("v_lshrrev_b32 v14, 4, v4")
    e.i("v_xor_b32 v11, v13, v14")
    e.i("v_lshlrev_b32 v11, 4, v11")
    e.i("v_lshl_add_u32 v11, v14, 8, v11")
    e.i(f"v_add_u32 v11, s{sT+4}, v11")
    e.i("v_xor_b32 v12, 64, v11")
    e.i(f"s_and_b32 s{sT+6}, s{sT}, 127")
    e.i(f"v_add_u32 v15, s{sT+6}, v7")
    e.i("v_lshlrev_b32 v15, 3, v15")
    if side_work: side_work()
    def stats_center(T):
        a = [16, 17, 18, 19]
        first = [True] * 4
        for j in range(9):
            e.wait(vm=xt[T][j])
            for d in range(4):
                r = raw(T, j) + d
                k = d & 1
                e.i(f"v_dot2_f32_bf16 v{a[k]}, v{r}, s{sONES}, " + ("0" if first[k] else f"v{a[k]}")); first[k] = False
                e.i(f"v_dot2_f32_bf16 v{a[2+k]}, v{r}, v{r}, " + ("0" if first[2+k] else f"v{a[2+k]}")); first[2+k] = False
        e.i("v_add_f32 v16, v16, v17")
        e.i("v_add_f32 v18, v18, v19")
        for dpp in ("quad_perm:[1,0,3,2]", "quad_perm:[2,3,0,1]", "row_half_mirror"):
            e.i(f"v_add_f32_dpp v16, v16, v16 {dpp} row_mask:0xf bank_mask:0xf")
            e.i(f"v_add_f32_dpp v18, v18, v18 {dpp} row_mask:0xf bank_mask:0xf")
        e.i(f"v_mul_f32 v16, {f32(1/576)}, v16")
        e.i(f"v_mul_f32 v18, {f32(1/576)}, v18")
        e.i("v_fma_f32 v18, -v16, v16, v18")
        e.i("v_max_f32 v18, 0, v18")
        e.i("v_cvt_pk_bf16_f32 v17, v16, v18")
        e.i("v_lshlrev_b32 v21, 16, v17")
        e.i("v_and_b32 v18, 0xffff0000, v17")
        e.i(f"v_add_f32 v18, {f32(1e-5)}, v18")
        e.i("v_cvt_pk_bf16_f32 v18, v18, v18")
        e.i("v_and_b32 v18, 0xffff0000, v18")
        e.i("v_sqrt_f32 v18, v18")
        e.i("v_cvt_pk_bf16_f32 v18, v18, v18")
        e.i("v_and_b32 v20, 0xffff0000, v18")
        e.i(f"ds_write_b64 v22, v[20:21] offset:{T*32}")
        if stat_hook: stat_hook(T)
        for j in range(9):
            for d in range(4):
                r = raw(T, j) + d
                e.i(f"v_dot2_f32_bf16 v{24+2*d}, v{r}, s{sSELLO}, v21 neg_lo:[0,0,1]")
                e.i(f"v_dot2_f32_bf16 v{25+2*d}, v{r}, s{sSELHI}, v21 neg_lo:[0,0,1]")
            for d in range(4):
                e.i(f"v_cvt_pk_bf16_f32 v{raw(T, j)+d}, v{24+2*d}, v{25+2*d}")
            yield j
    def writes(T, j): e.i(f"ds_write_b128 v10, {vr(raw(T, j), 4)} offset:{j*2048}")
    def reads(T):
        for ks in range(18):
            e.i(f"ds_read_b128 {vr(xf(T, ks), 4)}, v{11 + (ks & 1)} offset:{ks*1024}")
    e.i(f"v_add_u32 v22, {L_STAT}, v15")
    for j in stats_center(0): writes(0, j)
    e.wait_all(vm=False)
    e.i("s_barrier")
    reads(0)
    for j in stats_center(1): pass
    e.wait_all(vm=False)
    e.i("s_barrier")
    for j in range(9): writes(1, j)
    e.wait_all(vm=False)
    e.i("s_barrier")
    reads(1)

def tags(e):
    e.i(f"s_mul_i32 s{sTAG1}, s{sTAG1}, 0x9E3779B1")
    e.i(f"s_add_u32 s{sTAG1}, s{sTAG1}, 0x7F4A7C15")
    e.i(f"s_mul_i32 s{sTAG2}, s{sTAG1}, 0x85EBCA6B")
    e.i(f"s_xor_b32 s{sTAG2}, s{sTAG2}, 0x5bd1e995")
    e.i(f"s_andn2_b32 s{sTAG2}, s{sTAG2}, 15")

def epoch_arrive(e, vtmp):
    e.i(f"s_cmp_lg_u32 s{sW}, 0")
    lab = uid("L_skip"); e.skip("s_cbranch_scc1", lab)
    e.opt = True
    srd(e, S_AUX, ptr(13), 256)
    e.i(f"v_mov_b32 v{vtmp}, 1")
    e.i("s_mov_b64 exec, 1")
    tok = e.i(f"buffer_atomic_add v{vtmp}, v{vL16}, s[{S_AUX}:{S_AUX+3}], 0 offen sc0")
    e.i("s_mov_b64 exec, -1")
    e.opt = False
    e.label(lab)
    return tok

def epoch_bump(e, vtmp, tok):
    e.i(f"s_cmp_lg_u32 s{sW}, 0")
    lab = uid("L_skip"); e.skip("s_cbranch_scc1", lab)
    save = e.vm_done
    e.wait(vm=tok)
    e.vm_done = save
    e.i(f"v_readfirstlane_b32 s{sT}, v{vtmp}")
    e.i(f"s_cmp_lg_u32 s{sT}, 255")
    e.skip("s_cbranch_scc1", lab)
    e.opt = True
    e.i(f"v_mov_b32 v{vtmp}, s{sTAG1}")
    e.i("s_mov_b64 exec, 1")
    e.i(f"buffer_store_dword v{vtmp}, v{vL16}, s[{S_WS}:{S_WS+3}], 0 offen sc1")
    e.i("s_mov_b64 exec, -1")
    e.opt = False
    e.label(lab)

def stamp(e, opt, idx):
    if opt.get("stamp"):
        e.i(f"s_memrealtime s[{sST+2*idx}:{sST+2*idx+1}]")
        e.i("s_waitcnt lgkmcnt(0)"); e.lg_done = e.lg

def stamp_out(e, opt, n):
    if not opt.get("stamp"): return
    e.i(f"s_lshl_b32 s{sT}, s2, 3")
    e.i(f"s_add_u32 s{sT}, s{sT}, s{sW}")
    e.i(f"s_lshl_b32 s{sT}, s{sT}, 6")
    e.i(f"s_add_u32 s{sT}, s{sT}, {STAMP}")
    e.i("s_mov_b64 exec, 1")
    for k in range(n):
        e.i(f"v_mov_b32 v4, s{sST+2*k}")
        e.i(f"buffer_store_dword v4, v{vL16}, s[{S_WS}:{S_WS+3}], s{sT} offen offset:{4*k}")
        e.i("s_nop 1")
    e.i("s_mov_b64 exec, -1")

def ffn(e, opt):
    xt, raw = xloads(e)
    slow = []
    vRA = 3
    vK1, vSB = 9, 11
    vTMP = 13
    vFL = 18
    vFA = 20; vEP = 21
    vRB0 = 24
    vRB12 = XF + 96
    ACC_B = XF
    srd(e, S_A, ptr(10), 576 * 9216)
    srd(e, S_B, ptr(11), 4608 * 1152)
    e.i("v_and_b32 v10, 6, v5")
    e.i("v_xor_b32 v10, v10, v6")
    e.i("v_lshlrev_b32 v10, 4, v10")
    e.i(f"s_movk_i32 s{sT+4}, 0x2400")
    e.i(f"v_mul_lo_u32 v{vDA}, v7, s{sT+4}")
    e.i(f"v_add_u32 v{vDA}, v{vDA}, v10")
    e.i(f"v_mul_u32_u24 v{vDB}, 1152, v5")
    e.i(f"v_add_u32 v{vDB}, v{vDB}, v10")
    e.i(f"s_mul_i32 s{sT+4}, s{sGRP}, 2304")
    e.i(f"s_mul_i32 s{sT+5}, s{sSUB}, 768")
    e.i(f"s_add_u32 s{sT+4}, s{sT+4}, s{sT+5}")
    for j in range(3):
        e.i(f"s_mul_i32 s{sT+5}, s{sW}, 3")
        e.i(f"s_add_u32 s{sT+5}, s{sT+5}, {j}")
        e.i(f"s_lshr_b32 s{sT+6}, s{sT+5}, 2")
        e.i(f"s_lshl_b32 s{sT+6}, s{sT+6}, 5")
        e.i(f"s_and_b32 s{sT+7}, s{sT+5}, 1")
        e.i(f"s_lshl_b32 s{sT+7}, s{sT+7}, 4")
        e.i(f"s_add_u32 s{sT+6}, s{sT+6}, s{sT+7}")
        e.i(f"s_and_b32 s{sT+7}, s{sT+5}, 2")
        e.i(f"s_lshl_b32 s{sT+7}, s{sT+7}, 1")
        e.i(f"s_add_u32 s{sT+6}, s{sT+6}, s{sT+7}")
        e.i(f"s_mul_i32 s{sA0+j}, s{sT+6}, 9216")
        e.i(f"s_add_u32 s{sA0+j}, s{sA0+j}, s{sT+4}")
        if j: e.i(f"s_sub_u32 s{sA0+j}, s{sA0+j}, {j*1024}")
    sched = [(0, u) for u in range(6)] + [(1, u) for u in range(3)] + [(2, u) for u in range(3)] + [(1, 3), (1, 4), (2, 3), (2, 4), (1, 5), (2, 5)]
    dma_tok = {}
    def dma(g):
        if g >= 36: return
        slot = g % 6
        if g < 18:
            u, st = divmod(g, 3)
            e.i(f"s_add_u32 m0, s{sM0W}, {slot*SLOT}")
            for j in range(3):
                e.i(f"s_add_u32 s{sT+7}, s{sA0+j}, {st*192*9216 + u*128}")
                dma_tok[g] = e.i(f"buffer_load_dwordx4 v{vDA}, s[{S_A}:{S_A+3}], s{sT+7} offen offset:{j*1024} lds")
        else:
            who, u = sched[g - 18]
            e.i(f"s_add_u32 s{sT+7}, s{sB0+who}, {u*64*1152}")
            for j in range(3):
                e.i(f"s_add_u32 m0, s{sM0W}, {slot*SLOT + j*896}")
                dma_tok[g] = e.i(f"buffer_load_dwordx4 v{vDB}, s[{S_B}:{S_B+3}], s{sT+7} offen offset:{j*128} lds")
    for g in range(3): dma(g)
    for who in range(3):
        e.i(f"s_add_u32 s{sT+4}, s{sSUB}, {who}")
        e.i(f"s_cmp_ge_u32 s{sT+4}, 3")
        e.i(f"s_cselect_b32 s{sT+5}, 3, 0")
        e.i(f"s_sub_u32 s{sT+4}, s{sT+4}, s{sT+5}")
        e.i(f"s_mul_i32 s{sT+5}, s{sGRP}, 3")
        e.i(f"s_add_u32 s{sT+5}, s{sT+5}, s{sT+4}")
        e.i(f"s_mul_i32 s{sT+6}, s{sT+5}, {384*1152}")
        e.i(f"s_mul_i32 s{sT+7}, s{sW}, {8*1152}")
        e.i(f"s_add_u32 s{sT+6}, s{sT+6}, s{sT+7}")
        e.i(f"s_mul_i32 s{sT+7}, s{sSUB}, 384")
        e.i(f"s_add_u32 s{sB0+who}, s{sT+6}, s{sT+7}")
        e.i(f"s_mul_i32 s{sT+6}, s{sMT}, 12")
        e.i(f"s_add_u32 s{sT+6}, s{sT+6}, s{sT+5}")
        e.i(f"s_lshl_b32 s{sT+6}, s{sT+6}, 3")
        e.i(f"s_add_u32 s{sT+6}, s{sT+6}, s{sW}")
        e.i(f"s_mul_i32 s{sHST+who}, s{sT+6}, 12288")
        e.i(f"s_add_u32 s{sHST+who}, s{sHST+who}, {WS_H}")
        e.i(f"s_lshl_b32 s{sT+6}, s{sT+6}, 6")
        if who == 0: e.i(f"s_add_u32 s{sFLG}, s{sT+6}, {WS_FLAGH}")
        else: e.i(f"s_add_u32 s{56+who}, s{sT+6}, {WS_FLAGH}")
    e.i(f"s_mov_b32 s{sSTG}, {3*SLOT}")
    ln_stage(e, xt, raw, opt)
    e.i("v_lshrrev_b32 v16, 2, v13")
    e.i("v_and_b32 v17, 3, v13")
    e.i("v_lshl_add_u32 v16, v16, 3, v17")
    e.i(f"s_lshl_b32 s{sT+4}, s{sRG}, 8")
    e.i(f"s_add_u32 s{sT+4}, s{sT+4}, {L_STAT}")
    e.i(f"v_lshl_add_u32 v16, v16, 3, s{sT+4}")
    e.i("v_bfe_u32 v17, v4, 2, 3")
    e.i("v_lshrrev_b32 v18, 1, v17")
    e.i("v_and_b32 v19, 3, v4")
    e.i("v_lshlrev_b32 v19, 3, v19")
    e.i("v_lshl_add_u32 v19, v17, 7, v19")
    e.i("v_lshrrev_b32 v22, 5, v4")
    e.i(f"s_lshl_b32 s{sT+5}, s{sCG}, 1")
    e.i(f"v_xor_b32 v18, s{sT+5}, v18")
    e.wait_all(vm=False)
    e.i(f"ds_read_b32 v{vSB}, v16")
    e.i(f"ds_read_b32 v{vSB+1}, v16 offset:32")
    e.i(f"v_mov_b32 v{vFA}, s57")
    e.i("v_cmp_eq_u32 vcc, 1, v4")
    e.i("v_mov_b32 v23, s58")
    e.i(f"v_cndmask_b32 v{vFA}, v{vFA}, v23, vcc")
    e.i(f"s_mul_i32 s{sT+6}, s{sCG}, 12288")
    e.i("v_mul_u32_u24 v23, 3072, v22")
    e.i(f"v_add3_u32 v23, v23, s{sT+6}, v19")
    for ft in range(4):
        e.i(f"v_xor_b32 v{vRB0+ft}, {ft}, v18")
        e.i(f"v_lshl_add_u32 v{vRB0+ft}, v{vRB0+ft}, 5, v23")
    e.i("v_lshl_add_u32 v23, v22, 10, v19")
    e.i(f"v_lshl_add_u32 v{vRA}, v18, 5, v23")
    e.i(f"v_xor_b32 v{vRA+1}, 32, v{vRA}")
    for st in (1, 2):
        for ft in range(2):
            e.i(f"v_add_u32 v{vRA+2*st+ft}, {st*2*SLOT}, v{vRA+ft}")
    tags(e)
    e.wait_all(vm=False)
    for T in range(2):
        e.i(f"v_rcp_f32 v{vK1+T}, v{vSB+T}")
    for T in range(2):
        e.i(f"v_mul_f32 v{vK1+T}, {f32(-LOG2E)}, v{vK1+T}")
    stamp(e, opt, 1)

    D = 4
    NFR = 36 * 12
    rd_tok = {}
    def read_frag(n):
        if n >= NFR: return
        g, k = divmod(n, 12)
        slot = g % 6; st, odd = divmod(slot, 2)
        dst = FR + (n % D) * 4
        if g < 18:
            ks, ft = divmod(k, 2)
            a = vRA + 2 * st + ft
            offs = [odd * SLOT + ks * 4096 + h * 2048 for h in range(2)]
        else:
            p, ft = divmod(k, 4)
            a = (vRB0 + ft) if st == 0 else (vRB12 + (st - 1) * 4 + ft)
            offs = [odd * SLOT + h * 6144 + p * 1024 for h in range(2)]
        for h in range(2):
            rd_tok[n] = e.i(f"ds_read_b64_tr_b16 {vr(dst+2*h, 2)}, v{a} offset:{offs[h]}")
    accA = lambda u: POOL + (48 if u & 1 else 32)
    Hs = lambda s: POOL + 8 * s
    F = Filler(e)
    hst_tok = {}
    def queue_silu(u):
        A = accA(u)
        for b in range(4):
            T = b >> 1
            for k in range(4): F.add(f"v_mul_f32 v{vTMP+k}, v{A+4*b+k}, v{vK1+T}")
            for k in range(4): F.add(f"v_exp_f32 v{vTMP+k}, v{vTMP+k}")
            for k in range(4): F.add(f"v_fma_f32 v{vTMP+k}, v{vTMP+k}, v{vSB+T}, v{vSB+T}")
            for k in range(4): F.add(f"v_rcp_f32 v{vTMP+k}, v{vTMP+k}")
            for k in range(4): F.add(f"v_mul_f32 v{A+4*b+k}, v{A+4*b+k}, v{vTMP+k}")
            for k in range(2): F.add(f"v_cvt_pk_bf16_f32 v{Hs(u)+2*b+k}, v{A+4*b+2*k}, v{A+4*b+2*k+1}")
            if b & 1:
                def st(u=u, T=T):
                    e.i(f"s_add_u32 s{sT+6}, s{sHST}, {u*2048}")
                    hst_tok[u] = e.i(f"buffer_store_dwordx4 {vr(Hs(u)+4*T, 4)}, v{vL16}, s[{S_WS}:{S_WS+3}], s{sT+6} offen offset:{T*1024} sc1")
                F.add(st, 4)
    def publish(prog, tok):
        e.wait(vm=tok)
        e.i(f"s_add_u32 s{sT+6}, s{sTAG2}, {prog}")
        e.i(f"v_mov_b32 v{vFL}, s{sTAG1}")
        e.i(f"v_mov_b32 v{vFL+1}, s{sT+6}")
        e.i("s_mov_b64 exec, 1")
        e.i(f"buffer_store_dwordx2 {vr(vFL, 2)}, v{vL16}, s[{S_WS}:{S_WS+3}], s{sFLG} offen sc1")
        e.i("s_mov_b64 exec, -1")
    vPL = 22
    def poll_issue():
        e.i("s_mov_b64 exec, 3")
        t = e.i(f"buffer_load_dwordx2 {vr(vPL, 2)}, v{vFA}, s[{S_WS}:{S_WS+3}], 0 offen sc1")
        e.i("s_mov_b64 exec, -1")
        return t
    def poll_test(em, need_):
        em.i(f"v_subrev_u32 v{vPL+1}, s{sTAG2}, v{vPL+1}")
        em.i(f"v_cmp_eq_u32 vcc, s{sTAG1}, v{vPL}")
        em.i(f"v_subrev_u32 v{vPL+1}, {need_}, v{vPL+1}")
        em.i(f"v_cmp_gt_u32 s[{sT+4}:{sT+5}], {16-need_}, v{vPL+1}")
        em.i(f"s_and_b32 s{sT+4}, s{sT+4}, vcc_lo")
        em.i(f"s_and_b32 s{sT+4}, s{sT+4}, 3")
        em.i(f"s_cmp_eq_u32 s{sT+4}, 3")
    def poll_check(tok, need_, name):
        e.wait(vm=tok)
        poll_test(e, need_)
        e.i(f"s_cbranch_scc0 L_slow_{name}")
        e.label(f"L_back_{name}")
        def out(em):
            em.label(f"L_slow_{name}")
            em.i(f"s_mov_b32 s{sSPIN}, 0x4000")
            em.label(f"L_spin_{name}")
            em.i("s_sleep 2")
            em.i("s_mov_b64 exec, 3")
            em.i(f"buffer_load_dwordx2 {vr(vPL, 2)}, v{vFA}, s[{S_WS}:{S_WS+3}], 0 offen sc1")
            em.i("s_mov_b64 exec, -1")
            em.i("s_waitcnt vmcnt(0)")
            poll_test(em, need_)
            em.i(f"s_cbranch_scc1 L_back_{name}")
            em.i(f"s_sub_u32 s{sSPIN}, s{sSPIN}, 1")
            em.i(f"s_cmp_lg_u32 s{sSPIN}, 0")
            em.i(f"s_cbranch_scc1 L_spin_{name}")
            em.i(f"s_branch L_back_{name}")
        slow.append(out)
    hld_tok = {}
    def hload(sb):
        if sb >= 18: return
        who, u = sched[sb]
        e.i(f"s_add_u32 s{sT+6}, s{sHST+who}, {u*2048}")
        for T in range(2):
            hld_tok[sb] = e.i(f"buffer_load_dwordx4 {vr(Hs(sb % 6)+4*T, 4)}, v{vL16}, s[{S_WS}:{S_WS+3}], s{sT+6} offen offset:{T*1024} sc1")
    ptok = None; etok = None
    for g in range(36):
        sb = g - 18
        e.wait(vm=max(dma_tok.get(g + 1, -1), hld_tok.get(sb, -1)))
        if g == 14: publish(3, hst_tok[2])
        if g == 20: publish(5, hst_tok[4])
        if g == 24: publish(6, hst_tok[5])
        if g == 20: poll_check(ptok, 3, "a")
        if g == 26: poll_check(ptok, 5, "b")
        if g == 30: poll_check(ptok, 6, "c")
        e.i("s_barrier")
        if g in (19, 25, 29): ptok = poll_issue()
        if g == 0:
            for gg in (3, 4, 5): dma(gg)
            for n in range(D): read_frag(n)
            etok = epoch_arrive(e, vEP)
        else:
            dma(g + 5)
        if g == 8: epoch_bump(e, vEP, etok)
        if g == 18:
            stamp(e, opt, 2)
        if g >= 3 and g <= 18 and g % 3 == 0:
            F.flush()
            pending = g // 3 - 1
        else: pending = None
        if g == 22: F.flush()
        for k in range(12):
            n = g * 12 + k
            e.wait(lg=rd_tok[n])
            w = vr(FR + (n % D) * 4, 4)
            for T in range(2):
                if g < 18:
                    u, st = divmod(g, 3); ks, ft = divmod(k, 2); ksg = st * 6 + ks
                    d = vr(accA(u) + T * 8 + ft * 4, 4)
                    e.i(f"v_mfma_f32_16x16x32_bf16 {d}, {w}, {vr(xf(T, ksg), 4)}, " + ("0" if ksg == 0 else d))
                else:
                    d = vr(ACC_B + k * 8 + T * 4, 4)
                    e.i(f"v_mfma_f32_16x16x32_bf16 {d}, {w}, {vr(Hs(sb % 6)+4*T, 4)}, " + ("0" if sb == 0 else d))
                if T == 1: read_frag(n + D)
                F.step(opt.get("budget", 7))
            if k == 1 and pending is not None:
                if sb == 0:
                    for st in (1, 2):
                        for ft in range(4): F.add(f"v_add_u32 v{vRB12+(st-1)*4+ft}, {st*2*SLOT}, v{vRB0+ft}")
                queue_silu(pending)
        if sb >= 2: hload(sb + 4)
    stamp(e, opt, 3)
    e.i("s_barrier")
    e.i(f"s_mul_i32 s{sT+4}, s{sW}, 12288")
    e.i(f"s_xor_b32 s{sT+5}, s{sW}, 4")
    e.i(f"s_mul_i32 s{sT+5}, s{sT+5}, 12288")
    e.i(f"v_add_u32 v3, s{sT+4}, v{vL16}")
    e.i(f"v_add_u32 v4, s{sT+5}, v{vL16}")
    send = [k for k in range(12) if k & 2]
    keep = [k for k in range(12) if not k & 2]
    for m, k in enumerate(send):
        for T in range(2):
            e.i(f"ds_write_b128 v3, {vr(ACC_B+k*8+T*4, 4)} offset:{(m*2+T)*1024}")
    e.wait_all(vm=False)
    e.i("s_barrier")
    rt = {}
    for m in range(6):
        for T in range(2):
            rt[m, T] = e.i(f"ds_read_b128 {vr(POOL+(m*2+T)*4, 4)}, v4 offset:{(m*2+T)*1024}")
    e.i(f"s_lshl_b32 s{sT+4}, s{sMT}, 2")
    e.i(f"s_add_u32 s{sT+4}, s{sT+4}, s{sRG}")
    e.i(f"s_mul_i32 s{sT+4}, s{sT+4}, 36")
    e.i(f"s_mul_i32 s{sT+5}, s{sSUB}, 12")
    e.i(f"s_add_u32 s{sT+4}, s{sT+4}, s{sT+5}")
    e.i(f"s_lshl_b32 s{sT+5}, s{sCG}, 1")
    e.i(f"s_add_u32 s{sT+4}, s{sT+4}, s{sT+5}")
    e.i(f"s_lshl_b32 s{sT+4}, s{sT+4}, 10")
    e.i(f"s_mul_i32 s{sT+5}, s{sGRP}, {PART_SRC}")
    e.i(f"s_add_u32 s{sT+4}, s{sT+4}, s{sT+5}")
    e.i(f"s_add_u32 s{sPART}, s{sT+4}, {WS_PART}")
    for m, k in enumerate(keep):
        e.wait(lg=rt[m, 1])
        for j in range(8):
            e.i(f"v_add_f32 v{ACC_B+k*8+j}, v{ACC_B+k*8+j}, v{POOL+m*8+j}")
        for j in range(4):
            e.i(f"v_cvt_pk_bf16_f32 v{ACC_B+k*8+j}, v{ACC_B+k*8+2*j}, v{ACC_B+k*8+2*j+1}")
        p, ft = divmod(k, 4)
        e.i(f"s_add_u32 s{sT+6}, s{sPART}, {p*4096}")
        e.i(f"buffer_store_dwordx4 {vr(ACC_B+k*8, 4)}, v{vL16}, s[{S_WS}:{S_WS+3}], s{sT+6} offen offset:{ft*1024} sc1")
    if opt.get("stamp"):
        e.wait_all()
        stamp(e, opt, 4)
        stamp_out(e, opt, 5)
    e.i("s_endpgm")
    for o in slow:
        o(e)

from gen_ssm import ssm
from gen_fin import fin

def kd(name, vg, sg):
    return (f".amdhsa_kernel {name}\n  .amdhsa_next_free_vgpr {vg}\n  .amdhsa_next_free_sgpr {sg}\n  .amdhsa_accum_offset {vg}\n"
            "  .amdhsa_group_segment_fixed_size 0\n  .amdhsa_kernarg_size 120\n  .amdhsa_user_sgpr_count 2\n"
            "  .amdhsa_user_sgpr_kernarg_segment_ptr 1\n  .amdhsa_system_sgpr_workgroup_id_x 1\n"
            "  .amdhsa_float_denorm_mode_32 3\n.end_amdhsa_kernel\n")

def build(opt):
    import copy
    hdr = open(f"cdna_kernels/{NAME}.s.ref").read().split("; Override launch")[0]
    out = hdr
    out += f"; @launch kernel={K1} grid=(256,1,1) block=(512,1,1) lds={LDS_TOTAL}\n"
    out += f"; @launch kernel={K2} grid=(576,1,1) block=(256,1,1) lds=0\n"
    out += '.amdgcn_target "amdgcn-amd-amdhsa--gfx950"\n.text\n'
    e = Em()
    e.raw(f".globl {K1}\n.p2align 8\n.type {K1},@function\n{K1}:")
    prologue(e, opt)
    e.i(f"s_cmp_eq_u32 s{sSUB}, 3")
    e.i("s_cbranch_scc1 L_ssm")
    e2 = copy.deepcopy(e); e2.lines = []
    ffn(e, opt)
    e2.label("L_ssm")
    e2.lines += [""] * 0
    ssm(e2, opt, sys.modules[__name__])
    e2.label("L_k1_end")
    e2.i("s_endpgm")
    out += e.text() + e2.text()
    e3 = Em()
    e3.raw(f".globl {K2}\n.p2align 8\n.type {K2},@function\n{K2}:")
    fin(e3, opt, sys.modules[__name__])
    out += e3.text()
    out += '.section .rodata,"a"\n.p2align 6\n' + kd(K1, 256, 102) + ".p2align 6\n" + kd(K2, 64, 64)
    print(f"nops: ffn {e.nops} ssm {e2.nops} fin {e3.nops}", file=sys.stderr)
    return out

if __name__ == "__main__":
    opt = {}
    outp = f"cdna_kernels/{NAME}.s"
    for a in sys.argv[1:]:
        if a.startswith("out="): outp = a[4:]
        else:
            k, v = a.split("="); opt[k] = int(v)
    open(outp, "w").write(build(opt))
```
